```python
import torch

def _softmax(x, axis=-1):
    return torch.softmax(x, dim=axis)
def _gelu(x):
    return torch.nn.functional.gelu(x, approximate="tanh")
def _silu(x):
    return torch.nn.functional.silu(x)
def _sigmoid(x):
    return torch.sigmoid(x)
def _layernorm(x, axis=-1, eps=1e-5):
    m = x.mean(dim=axis, keepdim=True)
    v = x.var(dim=axis, keepdim=True, unbiased=False)
    return (x - m) / torch.sqrt(v + eps)
def _scatter_add(tgt, idx, src, axis=0):
    return tgt.clone().index_add_(axis, idx, src)
def _segment_sum(src, seg, n):
    out = torch.zeros((n,) + src.shape[1:], dtype=src.dtype)
    return out.index_add_(0, seg, src)
def _pad(x, pw):
    flat = tuple(v for pair in reversed(pw) for v in pair)
    return torch.nn.functional.pad(x, flat)

kernel_name = 'concat_heads__mha_block_cached__mha_block_cached__near_ridge'

def setup_inputs():

    _w = (lambda a: (lambda t: t.to(torch.bfloat16) if t.is_floating_point() else t)(torch.as_tensor(a)))
    def _A_setup():
        B, Sq, D = 16, 128, 640
        H, Sk, Dh = 32, 512, 128
        return {
            "x": _w((lambda *s: torch.randn(*s, dtype=torch.bfloat16) * 0.8)(B, Sq, D)),
            "k_cache": _w((lambda *s: torch.randn(*s, dtype=torch.bfloat16) * 0.8)(B, H, Sk, Dh)),
            "v_cache": _w((lambda *s: torch.randn(*s, dtype=torch.bfloat16) * 0.05)(B, H, Sk, Dh)),
            "wq": _w((lambda *s: torch.randn(*s, dtype=torch.bfloat16) * 0.8)(D, H * Dh) * (D ** -0.5)),
            "wo": _w((lambda *s: torch.randn(*s, dtype=torch.bfloat16) * 0.05)(H * Dh, D) * ((H * Dh) ** -0.5)),
        }
    _A_in = _A_setup()

    def _B_setup():
        B, Sq, D = 16, 128, 640
        H, Sk, Dh = 32, 512, 128
        return {
            "x": _w((lambda *s: torch.randn(*s, dtype=torch.bfloat16) * 0.8)(B, Sq, D)),
            "k_cache": _w((lambda *s: torch.randn(*s, dtype=torch.bfloat16) * 0.8)(B, H, Sk, Dh)),
            "v_cache": _w((lambda *s: torch.randn(*s, dtype=torch.bfloat16) * 0.05)(B, H, Sk, Dh)),
            "wq": _w((lambda *s: torch.randn(*s, dtype=torch.bfloat16) * 0.8)(D, H * Dh) * (D ** -0.5)),
            "wo": _w((lambda *s: torch.randn(*s, dtype=torch.bfloat16) * 0.05)(H * Dh, D) * ((H * Dh) ** -0.5)),
        }
    _B_in = _B_setup()

    return {
        "A_x": _A_in["x"],
        "A_k_cache": _A_in["k_cache"],
        "A_v_cache": _A_in["v_cache"],
        "A_wq": _A_in["wq"],
        "A_wo": _A_in["wo"],
        "B_x": _B_in["x"],
        "B_k_cache": _B_in["k_cache"],
        "B_v_cache": _B_in["v_cache"],
        "B_wq": _B_in["wq"],
        "B_wo": _B_in["wo"],
    }

def reference(A_x, A_k_cache, A_v_cache, A_wq, A_wo, B_x, B_k_cache, B_v_cache, B_wq, B_wo):
    def _A_ref(x, k_cache, v_cache, wq, wo):
        B, Sq, D = x.shape
        H, Dh = 32, 128
        q = (lambda x, *d: x.permute(*d))((x @ wq).reshape(B, Sq, H, Dh), 0, 2, 1, 3)
        scores = torch.einsum("bhqd,bhkd->bhqk", q, k_cache) * (Dh ** -0.5)
        p = _softmax(scores, axis=-1)
        o = torch.einsum("bhqk,bhkd->bhqd", p, v_cache)
        return (lambda x, *d: x.permute(*d))(o, 0, 2, 1, 3).reshape(B, Sq, H * Dh) @ wo

    def _B_ref(x, k_cache, v_cache, wq, wo):
        B, Sq, D = x.shape
        H, Dh = 32, 128
        q = (lambda x, *d: x.permute(*d))((x @ wq).reshape(B, Sq, H, Dh), 0, 2, 1, 3)
        scores = torch.einsum("bhqd,bhkd->bhqk", q, k_cache) * (Dh ** -0.5)
        p = _softmax(scores, axis=-1)
        o = torch.einsum("bhqk,bhkd->bhqd", p, v_cache)
        return (lambda x, *d: x.permute(*d))(o, 0, 2, 1, 3).reshape(B, Sq, H * Dh) @ wo

    a = _A_ref(A_x, A_k_cache, A_v_cache, A_wq, A_wo)
    b = _B_ref(B_x, B_k_cache, B_v_cache, B_wq, B_wo)
    return torch.concatenate([a, b], axis=-1)
```

```python
import re
TRANS = ("v_exp_f32","v_log_f32","v_rcp_f32","v_rsq_f32","v_sqrt_f32")
def regs(tok):
    tok = tok.strip().lstrip("-").strip("|")
    m = re.fullmatch(r"([vas])(\d+)", tok)
    if m: return [m.group(1)+m.group(2)]
    m = re.fullmatch(r"([vas])\[(\d+):(\d+)\]", tok)
    if m: return [m.group(1)+str(i) for i in range(int(m.group(2)), int(m.group(3))+1)]
    if tok in ("vcc","m0","exec","scc"): return [tok]
    return []
def R(c, i, n=1): return f"{c}{i}" if n == 1 else f"{c}[{i}:{i+n-1}]"
def v(i, n=1): return R("v", i, n)
def a(i, n=1): return R("a", i, n)
def s(i, n=1): return R("s", i, n)

class Ins:
    __slots__=("text","op","kind","wr","rd","C","D","passes","cost","wide","tag")
def parse(text, tag=None):
    t = text.strip(); sp = t.split(None, 1); op = sp[0]
    ops = [x.strip() for x in sp[1].split(",")] if len(sp) > 1 else []
    if ops:
        last = ops[-1].split(); ops[-1] = last[0]; mods = last[1:]
    else: mods = []
    I = Ins(); I.text=t; I.op=op; I.C=set(); I.D=None; I.passes=0; I.cost=4; I.wide=set(); I.tag=tag
    rr = [regs(o) for o in ops]; fl = lambda L: set(x for y in L for x in y)
    if op.startswith("v_mfma"):
        I.kind="mfma"; I.wr=set(rr[0]); I.rd=fl(rr[1:3]); I.C=set(rr[3]); I.D=(ops[0],ops[3]); I.passes = 8 if "32x32" in op else 4; I.cost=8
    elif op.startswith("v_permlane"):
        I.kind="perm"; I.wr=fl(rr); I.rd=fl(rr)
    elif op.startswith("v_"):
        I.kind = "trans" if op in TRANS else "valu"; I.wr=set(rr[0]); I.rd=fl(rr[1:])
        if op.startswith("v_fmac") or op.startswith("v_dot2c"): I.rd |= I.wr
        if I.kind=="trans": I.cost=8
    elif op.startswith("ds_read"):
        I.kind="dsr"; I.wr=set(rr[0]); I.rd=fl(rr[1:])
    elif op.startswith("ds_write"):
        I.kind="dsw"; I.wr=set(); I.rd=fl(rr)
    elif op.startswith("buffer_load") or op.startswith("global_load"):
        if "lds" in mods: I.kind="dma"; I.wr=set(); I.rd=fl(rr)|{"m0"}; I.cost=16
        else: I.kind="vml"; I.wr=set(rr[0]); I.rd=fl(rr[1:]); I.cost=8
    elif op.startswith("buffer_store") or op.startswith("buffer_atomic"):
        I.kind="vms"; I.wr=set(); I.rd=fl(rr); I.cost=8
        if "x4" in op or "x3" in op: I.wide=set(rr[0])
    elif op.startswith("s_load"):
        I.kind="smem"; I.wr=set(rr[0]); I.rd=fl(rr[1:])
    elif op.startswith("s_"):
        I.kind="salu"
        nod = op.startswith(("s_cmp","s_waitcnt","s_barrier","s_nop","s_branch","s_cbranch","s_endpgm","s_setprio","s_sleep","s_bitcmp"))
        I.wr = set() if nod else set(rr[0]); I.rd = fl(rr if nod else rr[1:])
    else: raise ValueError(text)
    return I
VAL=("valu","trans","perm"); MEM=("dsr","dsw","dma","vml","vms")
def need(p, c):
    n = 0
    isv = lambda S: any(x[0] in "va" and x!="vcc" for x in S)
    if p.kind in VAL:
        if c.kind=="mfma" and p.wr & (c.rd|c.C): n=max(n,2)
        if c.kind=="perm" and p.wr & c.rd: n=max(n,2)
        if c.op.startswith("v_readfirstlane") and p.wr & c.rd: n=max(n,1)
        if p.kind=="trans" and c.kind in ("valu","perm") and p.wr & c.rd: n=max(n,1)
        sw = {x for x in p.wr if x[0]=="s" or x=="vcc"}
        if sw:
            if c.kind in VAL and sw & c.rd: n=max(n,2)
            if c.kind in MEM and sw & c.rd: n=max(n,5)
    if p.kind=="mfma":
        big = 12 if p.passes==8 else 8
        if c.kind=="mfma":
            if p.wr & c.C and not (p.D[0]==c.D[1] and p.passes==c.passes): n=max(n,big-2)
            if p.wr & c.rd: n=max(n,big)
        elif c.kind in VAL or c.kind in MEM:
            if p.wr & (c.rd|c.wr): n=max(n,big)
            if c.kind in VAL and p.C & c.wr: n=max(n,7 if p.passes==8 else 3)
    if p.kind=="salu" and "m0" in p.wr and c.kind=="dma": n=max(n,1)
    if p.wide and p.wide & c.wr: n=max(n,2)
    return n

class Asm:
    def __init__(S):
        S.out=[]; S.hist=[]; S.ds=[]; S.vm=[]; S.nops=0; S.cyc=0
    def raw(S, t): S.out.append(t)
    def label(S, l): S.out.append(l+":")
    def _push(S, I, ws=1):
        S.out.append("  "+I.text); S.cyc+=I.cost*ws if I.op=="s_nop" else I.cost
        S.hist=[(p,d+ws) for p,d in S.hist if d+ws<14]; S.hist.append((I,0))
    def wait(S, vm=None, lgkm=None):
        parts=[]
        if vm is not None and vm < len(S.vm):
            S.vm = S.vm[len(S.vm)-vm:] if vm else []; parts.append(f"vmcnt({vm})")
        if lgkm is not None and lgkm < len(S.ds):
            lgkm=min(lgkm,15); S.ds = S.ds[len(S.ds)-lgkm:] if lgkm else []; parts.append(f"lgkmcnt({lgkm})")
        if parts: S._push(parse("s_waitcnt "+" ".join(parts)))
    def vm_need(S, tag):
        idx=[k for k,(t,_) in enumerate(S.vm) if t==tag]
        return len(S.vm)-1-idx[-1] if idx else None
    def wait_tag(S, tag): S.wait(vm=S.vm_need(tag))
    def i(S, text, tag=None):
        I = parse(text, tag) if isinstance(text,str) else text
        touch = I.rd|I.wr|I.C
        dn=[k for k,d in enumerate(S.ds) if d & touch]; vn=[k for k,(t,d) in enumerate(S.vm) if d & touch]
        S.wait(vm=(len(S.vm)-1-vn[-1]) if vn else None, lgkm=(len(S.ds)-1-dn[-1]) if dn else None)
        n = max([need(p,I)-d for p,d in S.hist]+[0])
        while n>0:
            k=min(n,8); S._push(parse(f"s_nop {k-1}"),k); S.nops+=k; n-=k
        S._push(I)
        if I.kind in ("dsr","dsw"): S.ds.append(set(I.wr))
        if I.kind in ("dma","vml","vms"):
            S.vm.append((I.tag,set(I.wr))); assert len(S.vm)<=63, "vmcnt overflow"
        return I
    def many(S, L):
        for x in L: S.i(x)
    def flush_hz(S):
        S._push(parse("s_nop 7"),8); S._push(parse("s_nop 4"),5)
    def text(S): return "\n".join(S.out)+"\n"
```

```python
import sys, struct
from asmlib import *
NAME="concat_heads__mha_block_cached__mha_block_cached__near_ridge"
OPT=dict(D=6, NS=8, NT=1, DMA0=1)
for x in sys.argv[2:]:
    k,val=x.split("="); OPT[k]=int(val)
D=OPT["D"]; NS=OPT["NS"]; G0=16-D
CSC=struct.unpack("<I",struct.pack("<f",1.4426950408889634/128**0.5))[0]
O=0; SB=[64,96]; QA=128; Q=192; KC=224; VC=232; KB=236; VB=237; DK=238; DV=239; DW=240
M=[241,250]; L0=242; L1=243; NM=244; AL=245; T0=246; T1=247; OV=248; XV=249; TV=251; TR=252; TS=253; JK=254
XA=0; ST=160
sK,sV,sW,sX,sO,sT,sU=8,12,16,20,24,28,64
sKo,sVo,sWo,sRd,sLim,sBase,sC,sCnt,sOo,sWv,sTmp=32,33,34,39,40,41,42,43,44,45,46
MF="v_mfma_f32_32x32x16_bf16"

def srd(A,d,lo,hi,off,nrec):
    A.i(f"s_add_u32 {s(d)}, {lo}, {off}"); A.i(f"s_addc_u32 {s(d+1)}, {hi}, 0")
    A.i(f"s_mov_b32 {s(d+2)}, {nrec}"); A.i(f"s_mov_b32 {s(d+3)}, 0x20000")

def items(t):
    ty,j=t[0],t[1]; L=[]
    for n in range(16):
        st=ST+4*(n%NS)
        if ty=="K":
            kb,sx=n>>3,n&7; d=v(SB[j&1]+16*kb,16)
            L.append((f"{MF} {d}, {a(st,4)}, {v(Q+4*sx,4)}, {d if sx else 0}",
                      [f"ds_read_b128 {a(st,4)}, {v(KC+sx)} offset:{2048*kb}"]))
        else:
            ks,db=n>>2,n&3
            if ty=="V": d=v(O+16*db,16); b=v(SB[j&1]+8*ks,4)
            else: d=v(QA+16*db,16); b=a(XA+16*j+4*ks,4)
            L.append((f"{MF} {d}, {a(st,4)}, {b}, {d if (j or ks) else 0}",
                      [f"ds_read_b64_tr_b16 {a(st+2*e,2)}, {v(VC+db)} offset:{4096*ks+1024*e}" for e in (0,1)]))
    return L
def addr_upd(ty):
    if ty=="K": return [f"v_add_u32 {v(KC)}, {s(sRd)}, {v(KB)}"]+[f"v_xor_b32 {v(KC+k)}, {32*k}, {v(KC)}" for k in range(1,8)]
    return [f"v_add_u32 {v(VC)}, {s(sRd)}, {v(VB)}"]+[f"v_xor_b32 {v(VC+k)}, {64*k}, {v(VC)}" for k in range(1,4)]
ADV=[f"s_add_u32 {s(sRd)}, {s(sRd)}, 0x4000", f"s_cmp_lt_u32 {s(sRd)}, 0x28000", f"s_cselect_b32 {s(sRd)}, {s(sRd)}, 0"]
def dma(t, tag):
    ty,j=t[0],t[1]; G=[]; nt=" nt" if OPT["NT"] else ""
    for i in range(4):
        if ty=="K": g=[f"buffer_load_dwordx4 {v(DK)}, {s(sK,4)}, {s(sKo)} offen offset:{1024*i}{nt} lds", f"s_add_u32 {s(sKo)}, {s(sKo)}, {3072 if i<3 else 7168}"]
        elif ty=="V": g=[f"buffer_load_dwordx4 {v(DV)}, {s(sV,4)}, {s(sVo)} offen offset:{1024*i}{nt} lds"]+([f"s_add_u32 {s(sVo)}, {s(sVo)}, 0x4000"] if i==3 else [])
        elif ty in "Wn":
            inc=31744 if i<3 else (429056 if j<9 else (256-9*524288-3*31744)&0xffffffff)
            g=[f"buffer_load_dwordx4 {v(DW)}, {s(sW,4)}, {s(sWo)} offen offset:{1024*i} lds", f"s_add_u32 {s(sWo)}, {s(sWo)}, {inc:#x}"]
        else: g=[f"buffer_load_dwordx4 {v(TV)}, {s(sU,4)}, 0 offen offset:{1024*i} lds"]+([f"v_add_u32 {v(TV)}, 0x4000, {v(TV)}"] if i==3 else [])
        if i==3: g+=["s_add_u32 m0, m0, 0x4000", f"s_cmp_lt_u32 m0, {s(sLim)}", f"s_cselect_b32 m0, m0, {s(sBase)}"]
        G.append([parse(x, tag) for x in g])
    return G
def softmax(j):
    S=SB[j&1]; mo,mn=M[(j+1)&1],M[j&1]; A_=[]
    def chain(t,vals):
        r=[f"v_max3_f32 {v(t)}, {v(vals[0])}, {v(vals[1])}, {v(vals[2])}"]
        for k in range(3,len(vals),2): r.append(f"v_max3_f32 {v(t)}, {v(t)}, {v(vals[k])}, {v(vals[k+1])}")
        return r
    c0=chain(T0,[S+k for k in range(0,7)]); c1=chain(T1,[S+k for k in range(7,16)])
    A_+= [x for p in zip(c0,c1) for x in p]+c1[3:]
    for k in range(16,32,4):
        A_+=[f"v_max3_f32 {v(T0)}, {v(T0)}, {v(S+k)}, {v(S+k+1)}", f"v_max3_f32 {v(T1)}, {v(T1)}, {v(S+k+2)}, {v(S+k+3)}"]
    A_.append(f"v_max3_f32 {v(T0)}, {v(T0)}, {v(T1)}, {v(mo)}" if j else f"v_max_f32 {v(T0)}, {v(T0)}, {v(T1)}")
    A_+=[f"v_mov_b32 {v(T1)}, {v(T0)}", f"v_permlane32_swap_b32 {v(T0)}, {v(T1)}", f"v_max_f32 {v(mn)}, {v(T0)}, {v(T1)}",
         f"v_mul_f32 {v(NM)}, {s(sC)}, {v(mn)}"]
    if j: A_+=[f"v_fma_f32 {v(AL)}, {v(mo)}, {s(sC)}, -{v(NM)}", f"v_exp_f32 {v(AL)}, {v(AL)}"]
    B_=[]
    f=lambda k: f"v_fma_f32 {v(S+k)}, {v(S+k)}, {s(sC)}, -{v(NM)}"
    e=lambda k: f"v_exp_f32 {v(S+k)}, {v(S+k)}"
    def ad(k):
        l=(L0,L1)[k&1]
        if k<2: return f"v_fma_f32 {v(l)}, {v(l)}, {v(AL)}, {v(S+k)}" if j else f"v_mov_b32 {v(l)}, {v(S+k)}"
        return f"v_add_f32 {v(l)}, {v(l)}, {v(S+k)}"
    cv=lambda p: f"v_cvt_pk_bf16_f32 {v(S+8*(p>>2)+(p&3))}, {v(S+2*p)}, {v(S+2*p+1)}"
    B_+=[f(0),f(1)]
    for p in range(17):
        if p<16: B_+=[e(2*p)]+([f(2*p+2)] if p<15 else [])+[e(2*p+1)]+([f(2*p+3)] if p<15 else [])
        if p>0: B_+=[ad(2*p-2),ad(2*p-1),cv(p-1)]
    C_=[f"v_mul_f32 {v(O+k)}, {v(AL)}, {v(O+k)}" for k in range(64)] if j else []
    return A_+B_, C_
def split(L, w):
    L=[parse(x) for x in L]; tot=sum(x.cost for x in L); out=[[] for _ in w]; acc=0; k=0; lim=w[0]/sum(w)*tot
    for x in L:
        while acc>=lim-1e-9 and k<len(w)-1: k+=1; lim+=w[k]/sum(w)*tot
        out[k].append(x); acc+=x.cost
    return out
QCONV=[f"v_cvt_pk_bf16_f32 {v(Q+p)}, {v(QA+2*p)}, {v(QA+2*p+1)}" for p in range(32)]
def epilogue():
    L=[f"v_add_f32 {v(T0)}, {v(L0)}, {v(L1)}", f"s_add_u32 {s(sTmp)}, {s(sOo)}, 0x2000", f"v_mov_b32 {v(T1)}, {v(T0)}", f"s_add_u32 {s(sTmp+1)}, {s(sOo)}, 0x4000",
       f"s_add_u32 {s(sTmp+2)}, {s(sOo)}, 0x6000", f"v_permlane32_swap_b32 {v(T0)}, {v(T1)}",
       f"v_add_f32 {v(T0)}, {v(T0)}, {v(T1)}", f"v_rcp_f32 {v(AL)}, {v(T0)}"]
    for c in range(8):
        b=O+8*c
        L+=[f"v_mul_f32 {v(b+k)}, {v(AL)}, {v(b+k)}" for k in range(8)]
        L+=[f"v_cvt_pk_bf16_f32 {v(b+k)}, {v(b+2*k)}, {v(b+2*k+1)}" for k in range(4)]
        so=s(sOo) if c<2 else s(sTmp+(c>>1)-1)
        L.append(f"buffer_store_dwordx4 {v(b,4)}, {v(OV)}, {s(sO,4)}, {so} offen offset:{512*(c&1)}")
    L.append(f"s_add_u32 {s(sOo)}, {s(sOo)}, 0x8000")
    return [parse(x,"st") for x in L]

def k1():
    A=Asm(); A.label("attn_kernel")
    A.i("s_cmp_ge_u32 s2, 256"); A.i("s_cbranch_scc1 K1END")
    A.i("s_load_dwordx16 s[68:83], s[0:1], 0"); A.i("s_load_dwordx4 s[84:87], s[0:1], 64"); A.i("s_load_dwordx2 s[88:89], s[0:1], 96")
    A.many(["v_lshrrev_b32 v1, 6, v0","v_and_b32 v0, 63, v0",f"v_readfirstlane_b32 {s(sWv)}, v1",
      "s_and_b32 s3, s2, 7","s_lshr_b32 s4, s2, 3","s_and_b32 s5, s3, 3","s_lshl_b32 s5, s5, 1","s_and_b32 s6, s4, 1","s_or_b32 s5, s5, s6",
      "s_lshr_b32 s4, s4, 1", "s_lshr_b32 s3, s3, 2",
      "v_lshrrev_b32 v2, 4, v0","v_and_b32 v3, 15, v0",
      "v_lshl_add_u32 v4, v1, 2, v2","v_xor_b32 v5, v3, v4","v_lshlrev_b32 v5, 4, v5",f"v_lshl_add_u32 {v(DK)}, v4, 8, v5",
      "v_lshl_add_u32 v4, v1, 4, v2","v_lshlrev_b32 v5, 2, v2","v_xor_b32 v5, v3, v5","v_lshlrev_b32 v5, 4, v5",
      f"v_lshl_add_u32 {v(DV)}, v4, 8, v5", f"v_lshl_add_u32 {v(DW)}, v4, 13, v5",
      "v_and_b32 v4, 19, v0","v_and_b32 v5, 4, v0","v_lshl_add_u32 v4, v5, 1, v4","v_and_b32 v5, 8, v0","v_lshrrev_b32 v5, 1, v5","v_or_b32 v4, v4, v5",
      "v_lshrrev_b32 v6, 5, v0",
      "v_and_b32 v5, 15, v4","v_xor_b32 v5, v5, v6","v_lshlrev_b32 v5, 4, v5",
      "v_and_b32 v7, 12, v4","v_lshl_add_u32 v5, v7, 10, v5","v_and_b32 v7, 16, v4","v_lshl_add_u32 v5, v7, 6, v5","v_and_b32 v7, 3, v4",f"v_lshl_add_u32 {v(KB)}, v7, 8, v5",
      "v_lshrrev_b32 v4, 2, v3","v_mul_u32_u24 v5, 320, v4","v_lshl_add_u32 v5, v6, 11, v5","v_and_b32 v7, 1, v2","v_lshl_add_u32 v5, v7, 5, v5",
      "v_and_b32 v7, 1, v0","v_lshl_add_u32 v5, v7, 4, v5","v_and_b32 v7, 2, v0",f"v_lshl_add_u32 {v(VB)}, v7, 2, v5",
      "v_and_b32 v7, 31, v0","v_lshl_add_u32 v7, v1, 5, v7","v_mul_u32_u24 v7, 1280, v7",f"v_lshl_add_u32 {v(XV)}, v6, 4, v7",
      "v_and_b32 v7, 1, v2","v_lshl_add_u32 v7, v1, 1, v7","v_lshlrev_b32 v7, 10, v7","v_lshl_add_u32 v7, v6, 8, v7",f"v_lshl_add_u32 {v(OV)}, v3, 4, v7",
      "v_lshlrev_b32 v7, 4, v0",f"v_lshl_add_u32 {v(TV)}, v1, 12, v7","v_mul_u32_u24 v8, 10240, v1",f"v_add_u32 {v(TS)}, v7, v8",
      "v_lshl_add_u32 v7, v2, 3, v4","v_mul_u32_u24 v7, 1280, v7","v_mul_u32_u24 v8, 320, v1","v_add_u32 v7, v7, v8","v_and_b32 v8, 3, v0","v_lshl_add_u32 v7, v8, 3, v7",
      f"v_add_u32 {v(TR)}, {7*16384}, v7",
      f"s_lshl_b32 {s(sBase)}, {s(sWv)}, 12", f"s_add_u32 {s(sLim)}, {s(sBase)}, 0x28000", f"s_mov_b32 m0, {s(sBase)}",
      f"s_mov_b32 {s(sKo)}, 0",f"s_mov_b32 {s(sVo)}, 0",f"s_mov_b32 {s(sWo)}, 0",f"s_mov_b32 {s(sRd)}, 0",f"s_mov_b32 {s(sOo)}, 0",
      f"s_mov_b32 {s(sC)}, {CSC:#x}", f"s_mov_b32 {s(sCnt)}, 3"])
    A.raw("  s_waitcnt lgkmcnt(0)")
    A.many(["s_cmp_lt_u32 s2, 128","s_cselect_b64 s[90:91], s[76:77], s[86:87]",
      "s_cmp_eq_u32 s3, 0","s_cselect_b64 s[68:69], s[68:69], s[78:79]","s_cselect_b64 s[70:71], s[70:71], s[80:81]",
      "s_cselect_b64 s[72:73], s[72:73], s[82:83]","s_cselect_b64 s[74:75], s[74:75], s[84:85]",
      "s_lshl_b32 s6, s5, 10"]); srd(A,sW,"s74","s75","s6",0); A.i(f"s_sub_u32 {s(sW+2)}, {640*8192}, s6")
    A.i("s_mul_i32 s6, s4, 163840"); srd(A,sX,"s68","s69","s6",163840)
    A.many(["s_lshl_b32 s6, s4, 3","s_or_b32 s6, s6, s5","s_lshl_b32 s7, s6, 19"]); srd(A,sK,"s70","s71","s7",524288); srd(A,sV,"s72","s73","s7",524288)
    A.many(["s_lshl_b32 s7, s3, 7","s_or_b32 s6, s6, s7","s_lshl_b32 s6, s6, 17"]); srd(A,sO,"s88","s89","s6",131072)
    A.many(["s_and_b32 s6, s2, 127","s_mul_i32 s6, s6, 40960"]); srd(A,sU,"s90","s91","s6",40960)
    A.many(["s_mul_i32 s6, s2, 40960","s_add_u32 s6, s6, 0x2000000"]); srd(A,sT,"s88","s89","s6",40960)
    P=[("W",i) for i in range(10)]+[("K",0)]
    B=[]
    for j in range(7): B+=[("W",j),("K",j+1),("V",j)]
    B+=[("W",7),("W",8),("W",9),("V",7),("K",0)]
    Ls=[]
    for j in range(7): Ls+=([("n",j)] if j<3 else [])+[("K",j+1),("V",j)]
    Ls+=[("V",7),("T",0),("T",1),("T",2)]
    seq=P+B+Ls; b0=len(P); l0=b0+len(B); assert (b0+3*len(B)+len(Ls)-3)%10==7
    xl=lambda k: parse(f"buffer_load_dwordx4 {a(XA+4*k,4)}, {v(XV)}, {s(sX,4)}, 0 offen offset:{32*k}","x")
    fill={k:[] for k in range(len(seq))}; pre={k:[] for k in range(len(seq))}
    wt={"V":3,"W":3,"K":4}
    for t,(ty,j) in enumerate(seq):
        if ty!="V": continue
        lo=b0 if t<l0 else l0
        k=t-1
        while k>=lo and seq[k]!=("K",j): k-=1
        st=[q for q in range(k+1,t) if seq[q][0]!="n"]
        ab,c=softmax(j)
        if len(st)==1 and c: fill[st[0]]+=[parse(x) for x in ab]; pre[t]+=[parse(x) for x in c]; continue
        parts=split(ab+c,[wt[seq[q][0]] for q in st])
        assert not c or len(parts[0])<=len(ab)
        for q,p in zip(st,parts): fill[q]+=p
    fill[l0-2]+=[parse(x) for x in QCONV]; pre[b0-1]+=[parse(x) for x in QCONV]
    fill[l0-1]+=epilogue()
    for I in epilogue():
        if I.kind=="vms": fill[b0-1].append(parse(f"buffer_load_dword {v(JK)}, {v(XV)}, {s(sX,4)}, 0 offen","st")); fill[b0-1][-1].wr=set()
        else: I.text=None; fill[b0-1].append(I)
    for k in range(4): fill[k]+=[xl(24+4*k+i) for i in range(4)]
    st=dict(issued=0, dq=[], rel=0, per=4)
    def barrier(t, nxt):
        for g in st["dq"]: A.many(g)
        A.wait_tag(nxt); A.i("s_barrier"); G=[]
        while st["issued"]<=min(t+9,len(seq)-1): G+=dma(seq[st["issued"]],st["issued"]); st["issued"]+=1
        st["dq"]=G; st["rel"]=0; st["per"]=max(1,16//max(1,len(G))) if OPT["DMA0"] else 1
    def restart(t):
        A.many(addr_upd(seq[t][0])); A.many(ADV); barrier(t-1,t)
        for n in range(D): A.many(items(seq[t])[n][1])
    for k in range(9):
        for g in dma(seq[k],k): A.many(g)
        if k<6: A.many([xl(4*k+i) for i in range(4)])
    st["issued"]=9
    restart(0)
    for t,(ty,j) in enumerate(seq):
        if t==b0:
            A.label("K1LOOP"); q0=[(x-b0 if isinstance(x,int) else x) for x,_ in A.vm]; d0=list(A.ds); c0=A.cyc
        if t==l0:
            A.many([f"s_sub_u32 {s(sCnt)}, {s(sCnt)}, 1", f"s_cmp_lg_u32 {s(sCnt)}, 0"]); A.flush_hz(); A.i("s_cbranch_scc1 K1LOOP")
            q1=[(x-l0 if isinstance(x,int) else x) for x,_ in A.vm]
            assert q1[len(q1)-len(q0):]==q0 and set(q0)==set(q1),(q0,q1); assert d0==A.ds
            print("body issue cycles",A.cyc-c0,file=sys.stderr)
            restart(t+1); continue
        if ty=="n": continue
        if ty=="T": break
        nx=t+1
        if seq[nx][0]=="n" and nx!=l0: nx+=1
        nty=seq[nx][0]; cur=items(seq[t]); nxt=items(("W",0) if nty=="n" else seq[nx]) if nty!="T" else None
        man={g:[] for g in range(16)}
        if nx==t+2: man[0]+=ADV
        if nxt:
            au=addr_upd(nty)
            for k,x in enumerate(au): man[(G0-8+k) if nty=="K" else (13-D+k)].append(x)
            man[G0+2]+=ADV
        A.many(pre[t]); F=fill[t]; tot=sum(x.cost for x in F); acc=0; fi=0
        for g in range(16):
            A.i(cur[g][0])
            if g==G0: barrier(t, nx if nty!="T" else nx+2)
            n=g+D
            if n<16: A.many(cur[n][1])
            A.many(man[g])
            if n>=16 and nxt: A.many(nxt[n-16][1])
            if st["dq"] and st["rel"]>=1 and (st["rel"]-1)%st["per"]==0: A.many(st["dq"].pop(0))
            st["rel"]+=1
            while fi<len(F) and acc<tot*(g+1)/16-1e-9:
                if F[fi].text: A.i(F[fi])
                acc+=F[fi].cost; fi+=1
    for n in range(10):
        for e in (0,1): A.i(f"ds_read_b64_tr_b16 {v(QA+4*n+2*e,2)}, {v(TR)} offset:{5120*e+32*n}")
        if n==4: A.many(epilogue())
    for n in range(10):
        if n%4==0: A.i(f"s_mov_b32 {s(sTmp)}, {1024*n}")
        A.i(f"buffer_store_dwordx4 {v(QA+4*n,4)}, {v(TS)}, {s(sT,4)}, {s(sTmp)} offen offset:{1024*(n%4)}")
    A.label("K1END"); A.i("s_endpgm")
    print("K1 nops",A.nops,"instrs",len(A.out),file=sys.stderr)
    return A.text()

def k2():
    A=Asm(); A.label("oproj_kernel"); M16="v_mfma_f32_16x16x32_bf16"
    VO,VW,VL,VR,VS=208,209,210,211,215
    A.i("s_cmp_ge_u32 s2, 256"); A.i("s_cbranch_scc1 K2END")
    A.i("s_load_dwordx2 s[68:69], s[0:1], 80"); A.i("s_load_dwordx2 s[70:71], s[0:1], 96")
    A.many(["v_lshrrev_b32 v1, 6, v0","v_and_b32 v0, 63, v0","v_readfirstlane_b32 s45, v1",
      "s_and_b32 s3, s2, 7","s_lshr_b32 s4, s2, 3","s_and_b32 s5, s4, 7",
      "s_lshr_b32 s4, s4, 3","s_lshl_b32 s6, s3, 2","s_or_b32 s4, s4, s6",
      "s_lshr_b32 s3, s3, 2",
      f"v_lshlrev_b32 {v(VO)}, 4, v0", f"v_mov_b32 {v(VW)}, {v(VO)}",
      "v_mul_u32_u24 v2, 40960, v1", f"v_add_u32 {v(VL)}, v2, {v(VO)}", f"v_lshl_add_u32 {v(VR)}, v1, 11, {v(VO)}", f"v_add_u32 {v(VR+1)}, 40960, {v(VR)}", f"v_add_u32 {v(VR+2)}, 81920, {v(VR)}", f"v_add_u32 {v(VR+3)}, 122880, {v(VR)}",
      "v_and_b32 v2, 15, v0","v_lshl_add_u32 v2, v1, 5, v2","v_mul_u32_u24 v2, 2560, v2","v_lshrrev_b32 v3, 4, v0",f"v_lshl_add_u32 {v(VS)}, v3, 3, v2",
      "s_mov_b32 s40, 4096","s_mov_b32 s41, 40960","s_mov_b32 s43, 8"])
    A.raw("  s_waitcnt lgkmcnt(0)")
    A.many(["s_lshl_b32 s6, s4, 20","s_lshl_b32 s7, s45, 18","s_add_u32 s6, s6, s7"]); srd(A,8,"s70","s71","s6",32*8192)
    A.many(["s_lshl_b32 s6, s3, 2","s_add_u32 s6, s6, s45","s_mul_i32 s6, s6, 1310720","s_mul_i32 s7, s5, 5120","s_add_u32 s6, s6, s7","s_add_u32 s6, s6, 0x2000000"])
    srd(A,12,"s70","s71","s6",31*40960+5120)
    A.many(["s_and_b32 s6, s4, 15","s_mul_i32 s6, s6, 327680","s_mul_i32 s7, s3, 1280","s_add_u32 s6, s6, s7","s_mul_i32 s7, s5, 160","s_add_u32 s6, s6, s7"])
    srd(A,16,"s68","s69","s6",127*2560+160)
    def loads(u):
        b=52*u; L=[]
        w=lambda c: f"buffer_load_dwordx4 {v(b+32+4*c,4)}, {v(VW)}, s[12:15], {'s40' if c==4 else 0} offen offset:{1024*(c&3)}"
        o=lambda q: f"buffer_load_dwordx4 {v(b+4*q,4)}, {v(VO)}, s[8:11], {'s40' if q>=4 else 0} offen offset:{1024*(q&3)}"
        L=[[w(0)]]+[[o(q)] for q in range(8)]+[[w(c)] for c in range(1,5)]
        L[8].append(f"v_add_u32 {v(VO)}, 0x2000, {v(VO)}"); L[12].append(f"v_add_u32 {v(VW)}, s41, {v(VW)}")
        return L
    for u in range(3):
        for g in loads(u): A.many(g)
    for k in range(160): A.i(f"v_accvgpr_write_b32 {a(k)}, 0")
    A.label("K2LOOP"); q0=list(A.vm)
    for u in range(4):
        L=loads((u+3)&3); b=52*u
        for n in range(40):
            c,q=n>>3,n&7
            A.i(f"{M16} {a(4*n,4)}, {v(b+32+4*c,4)}, {v(b+4*q,4)}, {a(4*n,4)}")
            if n%3==0 and L: A.many(L.pop(0))
    A.many(["s_sub_u32 s43, s43, 1","s_cmp_lg_u32 s43, 0","s_cbranch_scc1 K2LOOP"]); assert q0==A.vm
    for n in range(40): A.i(f"ds_write_b128 {v(VL)}, {a(4*n,4)} offset:{1024*n}")
    A.wait(vm=0,lgkm=0); A.i("s_barrier")
    for n in range(10):
        c,e=n>>1,n&1
        for sw in range(4): A.i(f"ds_read_b128 {v(16*n+4*sw,4)}, {v(VR+sw)} offset:{8192*c+1024*e}")
    for n in range(10):
        c,e=n>>1,n&1; b=16*n
        for r in range(4): A.i(f"v_add_f32 {v(b+r)}, {v(b+r)}, {v(b+4+r)}")
        for r in range(4): A.i(f"v_add_f32 {v(b+8+r)}, {v(b+8+r)}, {v(b+12+r)}")
        for r in range(4): A.i(f"v_add_f32 {v(b+r)}, {v(b+r)}, {v(b+8+r)}")
        A.i(f"v_cvt_pk_bf16_f32 {v(b)}, {v(b)}, {v(b+1)}"); A.i(f"v_cvt_pk_bf16_f32 {v(b+1)}, {v(b+2)}, {v(b+3)}")
        A.i(f"buffer_store_dwordx2 {v(b,2)}, {v(VS)}, s[16:19], {'s41' if e else 0} offen offset:{32*c}")
    A.label("K2END"); A.i("s_endpgm")
    return A.text()

ref=open(f"cdna_kernels/{NAME}.s.ref").read().split("\n")
hdr=[l for l in ref if l.startswith(";") and "@launch" not in l]
out="\n".join(hdr)+"\n; @launch kernel=attn_kernel grid=(256,1,1) block=(256,1,1) lds=163840\n; @launch kernel=oproj_kernel grid=(256,1,1) block=(256,1,1) lds=163840\n"
out+='.amdgcn_target "amdgcn-amd-amdhsa--gfx950"\n.text\n'
for nm,f in (("attn_kernel",k1),("oproj_kernel",k2)):
    out+=f".globl {nm}\n.p2align 8\n.type {nm},@function\n"+f()
out+='.section .rodata,"a"\n'
for nm in ("attn_kernel","oproj_kernel"):
    out+=f""".p2align 6
.amdhsa_kernel {nm}
  .amdhsa_next_free_vgpr 512
  .amdhsa_next_free_sgpr 102
  .amdhsa_accum_offset 256
  .amdhsa_group_segment_fixed_size 0
  .amdhsa_kernarg_size 104
  .amdhsa_user_sgpr_count 2
  .amdhsa_user_sgpr_kernarg_segment_ptr 1
  .amdhsa_system_sgpr_workgroup_id_x 1
.end_amdhsa_kernel
"""
open(sys.argv[1],"w").write(out)
```
